```python
import torch

def _softmax(x, axis=-1):
    return torch.softmax(x, dim=axis)
def _gelu(x):
    return torch.nn.functional.gelu(x, approximate="tanh")
def _silu(x):
    return torch.nn.functional.silu(x)
def _sigmoid(x):
    return torch.sigmoid(x)
def _layernorm(x, axis=-1, eps=1e-5):
    m = x.mean(dim=axis, keepdim=True)
    v = x.var(dim=axis, keepdim=True, unbiased=False)
    return (x - m) / torch.sqrt(v + eps)
def _scatter_add(tgt, idx, src, axis=0):
    return tgt.clone().index_add_(axis, idx, src)
def _segment_sum(src, seg, n):
    out = torch.zeros((n,) + src.shape[1:], dtype=src.dtype)
    return out.index_add_(0, seg, src)
def _pad(x, pw):
    flat = tuple(v for pair in reversed(pw) for v in pair)
    return torch.nn.functional.pad(x, flat)

kernel_name = 'recurrent_scan__gqa_block_cached__glu_gated_swiglu__decode'

def setup_inputs():

    _w = (lambda a: (lambda t: t.to(torch.bfloat16) if t.is_floating_point() else t)(torch.as_tensor(a)))
    def _A_setup():
        B, Sq, D = 4, 1, 512
        Hq, Hkv, Sk, Dh = 32, 8, 4096, 128
        assert Hq % Hkv == 0, (Hq, Hkv)
        return {
            "x": _w((lambda *s: torch.randn(*s, dtype=torch.bfloat16) * 0.05)(B, Sq, D)),
            "k_cache": _w((lambda *s: torch.randn(*s, dtype=torch.bfloat16) * 3.2)(B, Hkv, Sk, Dh)),
            "v_cache": _w((lambda *s: torch.randn(*s, dtype=torch.bfloat16) * 3.2)(B, Hkv, Sk, Dh)),
            "wq": _w((lambda *s: torch.randn(*s, dtype=torch.bfloat16) * 3.2)(D, Hq * Dh) * (D ** -0.5)),
            "wo": _w((lambda *s: torch.randn(*s, dtype=torch.bfloat16) * 3.2)(Hq * Dh, D) * ((Hq * Dh) ** -0.5)),
        }
    _A_in = _A_setup()

    def _B_setup():
        B, S, D, F = 4, 1, 512, 1792
        return {
            "x": _w((lambda *s: torch.randn(*s, dtype=torch.bfloat16) * 0.05)(B, S, D)),
            "w1": _w((lambda *s: torch.randn(*s, dtype=torch.bfloat16) * 0.4)(D, F) * (2.0 / D) ** 0.5),
            "w3": _w((lambda *s: torch.randn(*s, dtype=torch.bfloat16) * 0.4)(D, F) * (2.0 / D) ** 0.5),
            "w2": _w((lambda *s: torch.randn(*s, dtype=torch.bfloat16) * 0.4)(F, D) * (2.0 / F) ** 0.5),
        }
    _B_in = _B_setup()

    return {
        "A_x": _A_in["x"],
        "A_k_cache": _A_in["k_cache"],
        "A_v_cache": _A_in["v_cache"],
        "A_wq": _A_in["wq"],
        "A_wo": _A_in["wo"],
        "B_x": _B_in["x"],
        "B_w1": _B_in["w1"],
        "B_w3": _B_in["w3"],
        "B_w2": _B_in["w2"],
    }

def reference(A_x, A_k_cache, A_v_cache, A_wq, A_wo, B_x, B_w1, B_w3, B_w2):
    def _A_ref(x, k_cache, v_cache, wq, wo):
        B, Sq, D = x.shape
        Hq, Dh = 32, 128
        Hkv = k_cache.shape[1]
        rep = Hq // Hkv
        q = (lambda x, *d: x.permute(*d))((x @ wq).reshape(B, Sq, Hq, Dh), 0, 2, 1, 3)
        k = (lambda x, n, axis: torch.repeat_interleave(x, n, dim=axis))(k_cache, rep, axis=1)
        v = (lambda x, n, axis: torch.repeat_interleave(x, n, dim=axis))(v_cache, rep, axis=1)
        scores = torch.einsum("bhqd,bhkd->bhqk", q, k) * (Dh ** -0.5)
        p = _softmax(scores, axis=-1)
        o = torch.einsum("bhqk,bhkd->bhqd", p, v)
        return (lambda x, *d: x.permute(*d))(o, 0, 2, 1, 3).reshape(B, Sq, Hq * Dh) @ wo

    def _B_ref(x, w1, w3, w2):
        gate = torch.einsum("bsd,df->bsf", x, w1)
        up = torch.einsum("bsd,df->bsf", x, w3)
        h = _silu(gate) * up
        out = torch.einsum("bsf,fd->bsd", h, w2)
        return out

    x = A_x
    xn = _layernorm(x, axis=-1)
    s = _A_ref(xn, A_k_cache, A_v_cache, A_wq, A_wo)
    g = _silu(_B_ref(xn, B_w1, B_w3, B_w2))
    return x + s * g
```

```python
NAME = "recurrent_scan__gqa_block_cached__glu_gated_swiglu__decode"
HEADER = """; Kernarg layout (96 bytes): 0 A_x, 8 K, 16 V, 24 wq, 32 wo, 40 B_x, 48 w1, 56 w3, 64 w2, 72 out, 80 debug, 88 ws
{launch}
.amdgcn_target "amdgcn-amd-amdhsa--gfx950"
.text
"""
def kernel_begin(label):
    return f""".globl {label}
.p2align 8
.type {label},@function
{label}:
"""
def kernel_desc(label, vgpr=256, sgpr=102, accum=None):
    if accum is None: accum = (vgpr + 3)//4*4
    return f""".amdhsa_kernel {label}
  .amdhsa_next_free_vgpr {vgpr}
  .amdhsa_next_free_sgpr {sgpr}
  .amdhsa_accum_offset {accum}
  .amdhsa_group_segment_fixed_size 0
  .amdhsa_kernarg_size 96
  .amdhsa_user_sgpr_count 2
  .amdhsa_user_sgpr_kernarg_segment_ptr 1
  .amdhsa_system_sgpr_workgroup_id_x 1
.end_amdhsa_kernel
"""
class A:
    def __init__(self):
        self.l = []
    def __call__(self, s):
        for line in s.strip("\n").split("\n"):
            self.l.append("    " + line.strip() if not line.strip().endswith(":") else line.strip())
    def raw(self, s):
        self.l.append(s)
    def text(self):
        return "\n".join(self.l) + "\n"
```

```python
import sys
from asmlib import *
from hz import fix

WS_QG, WS_HG, WS_MLG, WS_OG, WS_SG, WS_O2G, WS_PROF = 0x10000, 0x40000, 0x50000, 0x100000, 0x200000, 0x300000, 0x400000
L_WQ, L_W1, L_W3 = 131072, 147456, 155648
L_RED, L_Q, L_ML, L_O = 131072, 152576, 153600, 153856
XN_A, XN_B = 12288, 28672
LOG2E = 0x3fb8aa3b
AB = 128
S0 = 48
VB = 64
KF = 210
ACC1, ACC2 = 194, 198

class G:
    def __init__(s, o):
        s.o = o; s.l = []; s.q = []; s.nst = 0; s.uid = 0
    def e(s, txt):
        for line in txt.strip("\n").split("\n"):
            t = line.strip()
            if not t: continue
            s.l.append(t if t.endswith(":") else "    " + t)
    def issue(s, name, role=None): s.q.append((name, role))
    def wait(s, name, role=None, lgkm=None):
        idx = max(i for i, (n, r) in enumerate(s.q) if n == name)
        n = sum(1 for (nm, r) in s.q[idx+1:] if r is None or r == role)
        s.e(f"s_waitcnt vmcnt({n})" + (f" lgkmcnt({lgkm})" if lgkm is not None else ""))
    def stamp(s, k):
        if s.o.get("prof"): s.e(f"s_memrealtime s[{60+2*k}:{61+2*k}]")
    def lab(s, base):
        s.uid += 1; return f"L_{base}_{s.uid}"
    def check(s, tags, reload, tmp):
        L = s.lab("chk"); Lok = s.lab("ok")
        s.e(f"{L}:")
        if len(tags) == 1:
            s.e(f"v_cmp_ne_u32 vcc, s46, v{tags[0]}")
        else:
            acc = []
            t = list(tags); k = 0
            while len(t) >= 2:
                a, b = t.pop(0), t.pop(0)
                s.e(f"v_bitop3_b32 v{tmp+k}, v{a}, v{b}, s46 bitop3:0x7e"); acc.append(tmp+k); k += 1
            if t:
                s.e(f"v_xor_b32 v{tmp+k}, s46, v{t[0]}"); acc.append(tmp+k); k += 1
            while len(acc) > 1:
                if len(acc) >= 3:
                    s.e(f"v_or3_b32 v{acc[0]}, v{acc[0]}, v{acc[1]}, v{acc[2]}"); acc = [acc[0]] + acc[3:]
                else:
                    s.e(f"v_or_b32 v{acc[0]}, v{acc[0]}, v{acc[1]}"); acc = [acc[0]]
            s.e(f"v_cmp_ne_u32 vcc, 0, v{acc[0]}")
        s.e(f"s_cbranch_vccz {Lok}")
        s.e("s_cmp_eq_u32 s47, 0")
        s.e(f"s_cbranch_scc1 {Lok}")
        s.e("s_sub_u32 s47, s47, 1")
        s.e(reload)
        s.e("s_waitcnt vmcnt(0)")
        s.e(f"s_branch {L}")
        s.e(f"{Lok}:")
    def rne(s, d, a): s.e(f"v_cvt_pk_bf16_f32 v{d}, 0, v{a}")
    def xrow(s, op, v, t):
        s.e(f"""v_mov_b32 v{t}, v{v}
        v_permlane16_swap_b32 v{v}, v{t}
        {op} v{v}, v{v}, v{t}
        v_mov_b32 v{t}, v{v}
        v_permlane32_swap_b32 v{v}, v{t}
        {op} v{v}, v{v}, v{t}""")
    def dpp(s, op, v, ctrl): s.e(f"{op}_dpp v{v}, v{v}, v{v} {ctrl} row_mask:0xf bank_mask:0xf")
    def wsum(s, v, t):
        for r in (8, 4, 2, 1): s.dpp("v_add_f32", v, f"row_ror:{r}")
        s.xrow("v_add_f32", v, t)
    def silu(s, d, x, t):
        s.e(f"""v_mul_f32 v{t}, 0xbfb8aa3b, v{x}
        v_exp_f32 v{t}, v{t}
        v_add_f32 v{t}, 1.0, v{t}
        v_rcp_f32 v{t}, v{t}
        v_mul_f32 v{t}, v{x}, v{t}""")
        s.rne(d, t)

def gemv16(g, vA, vB, bstep, bsec):
    def rd(m):
        sl = VB + 8*(m % 4)
        g.e(f"ds_read_b128 v[{sl}:{sl+3}], v{vA} offset:{m*64}")
        g.e(f"ds_read_b64_tr_b16 v[{sl+4}:{sl+5}], v{vB} offset:{m*bstep}")
        g.e(f"ds_read_b64_tr_b16 v[{sl+6}:{sl+7}], v{vB} offset:{m*bstep+bsec}")
    for m in range(4): rd(m)
    for m in range(16):
        left = min(3, 15-m)
        g.e(f"s_waitcnt lgkmcnt({3*left})")
        sl = VB + 8*(m % 4); acc = ACC1 if m % 2 == 0 else ACC2
        c = "0" if m < 2 else f"v[{acc}:{acc+3}]"
        g.e(f"v_mfma_f32_16x16x32_bf16 v[{acc}:{acc+3}], v[{sl}:{sl+3}], v[{sl+4}:{sl+7}], {c}")
        if m + 4 < 16: rd(m + 4)
    g.e(f"v_add_f32 v{ACC1}, v{ACC1}, v{ACC2}")

def gen(o):
    g = G(o); e = g.e
    NT = o.get("nt", "nt"); NTW = o.get("ntw", "nt"); NTO = o.get("nto", "")
    stop = o.get("stop", 99)
    g.stamp(0)
    if o.get("prof"):
        for k in (2, 4, 14): e(f"s_mov_b32 s{60+2*k}, 0\ns_mov_b32 s{61+2*k}, 0")
    e(f"""
    s_cmp_ge_u32 s2, 256
    s_cbranch_scc1 L_end
    s_load_dwordx2 s[40:41], s[0:1], 0
    s_load_dwordx2 s[4:5], s[0:1], 8
    s_load_dwordx2 s[12:13], s[0:1], 24
    s_load_dwordx2 s[20:21], s[0:1], 48
    s_load_dwordx2 s[24:25], s[0:1], 56
    s_load_dwordx2 s[36:37], s[0:1], 88
    v_and_b32 v1, 63, v0
    v_lshrrev_b32 v16, 6, v0
    s_and_b32 s44, s2, 7
    v_readfirstlane_b32 s3, v16
    s_lshr_b32 s45, s2, 3
    s_mov_b32 s42, 4096
    s_mov_b32 s43, 0x20000
    s_mov_b32 s6, 0x2000000
    s_mov_b32 s7, 0x20000
    s_mov_b32 s14, 0x400000
    s_mov_b32 s15, 0x20000
    s_mov_b32 s22, 0x1c0000
    s_mov_b32 s23, 0x20000
    s_mov_b32 s26, 0x1c0000
    s_mov_b32 s27, 0x20000
    s_mov_b32 s38, 0x1000000
    s_mov_b32 s39, 0x20000
    v_lshlrev_b32 v6, 4, v1
    v_lshrrev_b32 v16, 4, v1
    v_and_b32 v17, 15, v1
    v_lshlrev_b32 v18, 2, v16
    v_xor_b32 v18, v17, v18
    v_lshlrev_b32 v18, 4, v18
    v_lshl_add_u32 v2, v16, 8, v18
    v_xor_b32 v3, 16, v2
    v_xor_b32 v4, 32, v2
    v_xor_b32 v5, 48, v2
    v_lshrrev_b32 v18, 1, v1
    v_lshlrev_b32 v18, 13, v18
    v_and_b32 v19, 1, v1
    v_lshl_or_b32 v20, v19, 4, v18
    v_mul_u32_u24 v21, 0xe00, v1
    s_lshl_b32 s48, s45, 20
    s_lshl_b32 s50, s44, 10
    s_add_u32 s48, s48, s50
    s_lshl_b32 s51, s3, 13
    s_add_u32 s48, s48, s51
    s_lshl_b32 s49, s3, 14
    s_lshl_b32 s51, s3, 19
    s_add_u32 s51, s51, s50
    s_lshl_b32 s50, s45, 5
    s_add_u32 s51, s51, s50
    s_mul_i32 s52, s3, 229376
    s_mul_i32 s50, s44, 448
    s_add_u32 s52, s52, s50
    s_lshl_b32 s50, s45, 4
    s_add_u32 s52, s52, s50
    s_cmp_ge_u32 s45, 28
    s_cselect_b32 s52, 0x10000000, s52
    s_and_b32 s53, s3, 3
    s_lshl_b32 s53, s53, 10
    s_lshl_b32 s54, s3, 11
    s_add_u32 s54, s54, {L_WQ}
    s_lshl_b32 s55, s3, 10
    s_add_u32 s55, s55, {L_W1}
    s_waitcnt lgkmcnt(0)
    """)
    g.stamp(1)
    e(f"""
    buffer_load_dwordx4 v[24:27], v6, s[40:43], s53 offen
    s_mov_b32 m0, s54
    s_load_dwordx2 s[8:9], s[0:1], 16
    buffer_load_dwordx4 v20, s[12:15], s51 offen {NTW} lds
    s_add_u32 m0, s54, 1024
    s_add_u32 s51, s51, 0x40000
    buffer_load_dwordx4 v20, s[12:15], s51 offen {NTW} lds
    s_mov_b32 m0, s55
    s_load_dword s47, s[36:37], 0
    buffer_load_dwordx4 v21, s[20:23], s52 offen {NTW} lds
    s_add_u32 m0, s55, {L_W3-L_W1}
    s_load_dwordx2 s[16:17], s[0:1], 32
    buffer_load_dwordx4 v21, s[24:27], s52 offen {NTW} lds
    """)
    for n in ("x", "wq0", "wq1", "w1", "w3"): g.issue(n)
    def kload(k):
        e(f"s_add_u32 m0, s49, {k*1024}")
        e(f"s_add_u32 s50, s48, {k*65536}")
        e(f"buffer_load_dwordx4 v{2+(k&3)}, s[4:7], s50 offen {NT} lds")
        g.issue(f"K{k}")
    for k in range(8): kload(k)
    e(f"""
    s_load_dwordx2 s[28:29], s[0:1], 64
    s_load_dwordx2 s[32:33], s[0:1], 72
    s_mov_b32 s10, 0x2000000
    s_mov_b32 s11, 0x20000
    s_mov_b32 s18, 0x400000
    s_mov_b32 s19, 0x20000
    s_mov_b32 s30, 0x1c0000
    s_mov_b32 s31, 0x20000
    s_mov_b32 s34, 4096
    s_mov_b32 s35, 0x20000
    """)
    for k in range(17):
        e(f"v_mov_b32 v{AB+4*k}, 0\nv_mov_b32 v{AB+4*k+1}, 0")
    e(f"""
    v_and_b32 v18, 1, v1
    v_lshlrev_b32 v18, 4, v18
    v_mov_b32 v19, 0xffff
    v_lshlrev_b32 v19, v18, v19
    v_and_b32 v18, 2, v1
    v_cmp_eq_u32 vcc, 0, v18
    v_cndmask_b32 v13, 0, v19, vcc
    v_xor_b32 v14, v19, v13
    v_and_b32 v18, 3, v17
    v_lshlrev_b32 v18, 10, v18
    v_lshrrev_b32 v19, 2, v17
    v_lshl_add_u32 v18, v19, 8, v18
    v_xor_b32 v22, v16, v17
    v_lshl_add_u32 v18, v22, 4, v18
    v_add_u32 v8, s49, v18
    v_xor_b32 v9, 64, v8
    v_xor_b32 v10, 0x80, v8
    v_xor_b32 v11, 0xc0, v8
    v_lshlrev_b32 v18, 8, v19
    v_lshl_add_u32 v18, v16, 4, v18
    v_add_u32 v12, {L_Q}, v18
    v_lshlrev_b32 v18, 6, v19
    v_add_u32 v243, {L_ML}, v18
    s_lshl_b32 s50, s3, 3
    v_add_u32 v242, s50, v243
    v_mul_u32_u24 v18, 320, v16
    v_lshl_add_u32 v22, v17, 4, v18
    s_mul_i32 s50, s3, 2624
    s_add_u32 s50, s50, {L_RED}
    v_add_u32 v244, s50, v22
    v_bfe_u32 v22, v17, 2, 1
    v_mul_u32_u24 v22, 1312, v22
    v_add_u32 v18, v18, v22
    v_lshrrev_b32 v22, 3, v17
    v_lshl_add_u32 v18, v22, 4, v18
    v_and_b32 v22, 3, v17
    v_lshl_add_u32 v18, v22, 2, v18
    s_lshl_b32 s50, s3, 5
    s_add_u32 s50, s50, {L_RED}
    v_add_u32 v245, s50, v18
    v_lshlrev_b32 v252, 3, v0
    v_lshlrev_b32 v18, 1, v0
    v_add_u32 v202, {L_Q}, v18
    """)
    e(f"""
    v_and_b32 v18, 7, v1
    v_and_b32 v22, 1, v16
    v_lshlrev_b32 v22, 1, v22
    v_xor_b32 v18, v18, v22
    v_lshlrev_b32 v18, 4, v18
    v_lshrrev_b32 v22, 3, v1
    v_lshl_add_u32 v246, v22, 10, v18
    v_xor_b32 v247, 64, v246
    """)
    e(f"""
    v_lshl_add_u32 v18, v16, 3, v19
    v_lshlrev_b32 v18, 7, v18
    v_and_b32 v22, 1, v16
    v_lshlrev_b32 v22, 1, v22
    v_lshrrev_b32 v23, 3, v17
    v_add_u32 v22, v22, v23
    v_lshl_add_u32 v18, v22, 5, v18
    v_and_b32 v22, 3, v17
    v_lshl_add_u32 v18, v22, 3, v18
    v_add_u32 v248, s49, v18
    v_xor_b32 v249, 32, v248
    v_xor_b32 v250, 64, v248
    v_xor_b32 v251, 0x60, v248
    """)
    e(f"""
    v_and_b32 v18, 7, v1
    v_lshrrev_b32 v22, 3, v1
    v_lshlrev_b32 v23, 3, v22
    v_lshl_add_u32 v253, v18, 12, v23
    v_lshlrev_b32 v254, 6, v18
    s_lshl_b32 s50, s3, 4
    s_add_u32 s50, s50, {L_O}
    v_lshl_add_u32 v203, v22, 1, s50
    v_lshlrev_b32 v18, 4, v16
    v_add_u32 v204, {L_O}, v18
    s_waitcnt lgkmcnt(0)
    s_mul_i32 s46, s47, 0x9e3779b1
    s_add_u32 s46, s46, 0x7f4a7c15
    s_mov_b32 s100, s47
    s_mov_b32 s47, 100000
    v_mov_b32 v209, s46
    """)
    e("s_cmp_ge_u32 s3, 4\ns_cbranch_scc1 L_b1")
    g.wait("x")
    g.stamp(2)
    for k in range(4):
        e(f"v_lshlrev_b32 v{64+2*k}, 16, v{24+k}\nv_and_b32 v{65+2*k}, 0xffff0000, v{24+k}")
    e("""
    v_add_f32 v72, v64, v65
    v_add_f32 v73, v66, v67
    v_add_f32 v74, v68, v69
    v_add_f32 v75, v70, v71
    v_add_f32 v72, v72, v73
    v_add_f32 v74, v74, v75
    v_add_f32 v72, v72, v74
    """)
    g.wsum(72, 73)
    e("v_mul_f32 v72, 0x3b000000, v72")
    for k in range(8): e(f"v_sub_f32 v{80+k}, v{64+k}, v72")
    e("v_mul_f32 v74, v80, v80")
    for k in range(1, 8): e(f"v_fmac_f32 v74, v{80+k}, v{80+k}")
    g.wsum(74, 73)
    e("v_mul_f32 v74, 0x3b000000, v74")
    g.rne(74, 74)
    e("v_add_f32 v74, 0x3727c5ac, v74")
    g.rne(74, 74)
    e("v_sqrt_f32 v74, v74")
    g.rne(74, 74)
    e("v_rcp_f32 v74, v74")
    g.rne(72, 72)
    for k in range(8):
        e(f"v_sub_f32 v{80+k}, v{64+k}, v72")
    for k in range(8): g.rne(80+k, 80+k)
    for k in range(8): e(f"v_mul_f32 v{80+k}, v{80+k}, v74")
    for k in range(4): e(f"v_cvt_pk_bf16_f32 v{88+k}, v{80+2*k}, v{81+2*k}")
    e(f"""
    s_lshl_b32 s50, s3, 10
    v_add_u32 v73, s50, v6
    ds_write_b128 v73, v[88:91] offset:{XN_A}
    ds_write_b128 v73, v[88:91] offset:{XN_B}
    """)
    e("L_b1:")
    g.wait("w3", lgkm=0)
    e("s_barrier")
    g.stamp(3)
    e("s_cmp_lg_u32 s3, 0\ns_cbranch_scc1 L_n0")
    e(f"""
    v_lshlrev_b32 v18, 10, v19
    v_lshl_add_u32 v18, v16, 4, v18
    v_add_u32 v22, {XN_A}, v18
    v_lshl_add_u32 v18, v16, 3, v19
    v_lshlrev_b32 v18, 5, v18
    v_and_b32 v23, 3, v17
    v_lshl_add_u32 v18, v23, 3, v18
    v_add_u32 v23, {L_WQ}, v18
    """)
    gemv16(g, 22, 23, 1024, 128)
    e(f"""
    v_cvt_pk_bf16_f32 v208, v{ACC1}, v{ACC1}
    v_lshlrev_b32 v18, 15, v16
    v_lshl_add_u32 v18, v17, 3, v18
    s_lshl_b32 s50, s44, 12
    s_lshl_b32 s51, s45, 7
    s_add_u32 s50, s50, s51
    s_add_u32 s50, s50, {WS_QG}
    buffer_store_dwordx2 v[208:209], v18, s[36:39], s50 offen sc1
    """)
    g.issue("qpub", "w0")
    g.stamp(4)
    e("s_branch L_k8")
    e("L_n0:")
    e("s_cmp_lg_u32 s3, 1\ns_cbranch_scc1 L_n1")
    e(f"""
    v_lshlrev_b32 v18, 10, v19
    v_lshl_add_u32 v18, v16, 4, v18
    v_add_u32 v22, {XN_B}, v18
    v_lshl_add_u32 v18, v16, 3, v19
    v_lshlrev_b32 v18, 4, v18
    v_and_b32 v23, 1, v17
    v_lshl_add_u32 v18, v23, 3, v18
    v_bfe_u32 v23, v17, 1, 1
    v_lshl_add_u32 v18, v23, 13, v18
    v_add_u32 v23, {L_W1}, v18
    """)
    gemv16(g, 22, 23, 512, 64)
    g.rne(24, ACC1)
    e("v_mov_b32_dpp v25, v24 row_ror:8 row_mask:0xf bank_mask:0xf")
    g.silu(26, 24, 27)
    e("v_mul_f32 v26, v26, v25")
    e(f"""
    v_cvt_pk_bf16_f32 v208, v26, v26
    v_mul_u32_u24 v18, {1792*8}, v16
    v_lshl_add_u32 v18, v17, 3, v18
    s_mul_i32 s50, s44, {224*8}
    s_lshl_b32 s51, s45, 6
    s_add_u32 s50, s50, s51
    s_add_u32 s50, s50, {WS_HG}
    s_cmp_ge_u32 s45, 28
    s_cbranch_scc1 L_k8
    s_mov_b32 exec_lo, 0x00ff00ff
    s_mov_b32 exec_hi, 0x00ff00ff
    buffer_store_dwordx2 v[208:209], v18, s[36:39], s50 offen sc1
    s_mov_b64 exec, -1
    """)
    g.issue("hpub", "w1")
    g.stamp(4)
    e("s_branch L_k8")
    e("L_n1:")
    e("s_cmp_lg_u32 s3, 7\ns_cbranch_scc1 L_k8")
    e(f"""
    v_lshlrev_b32 v18, 10, v16
    v_lshl_add_u32 v22, v17, 4, v18
    s_lshr_b32 s50, s2, 2
    s_mul_i32 s56, s50, 28
    s_lshl_b32 s51, s56, 10
    s_and_b32 s57, s2, 3
    s_lshl_b32 s50, s57, 8
    s_add_u32 s51, s51, s50
    """)
    for k in range(7):
        e(f"buffer_load_dwordx4 v[{KF+4*k}:{KF+4*k+3}], v22, s[28:31], s51 offen {NTW}")
        if k < 6: e("s_add_u32 s51, s51, 4096")
        g.issue(f"w2t{k}", "w7")
    e("L_k8:")
    for k in range(8, 16):
        e("s_waitcnt vmcnt(7)")
        kload(k)
    g.stamp(5)
    if stop <= 1:
        e("s_waitcnt vmcnt(0)\ns_branch L_fin")
    qload = f"buffer_load_dwordx2 v[206:207], v252, s[36:39], s58 offen sc1"
    e(f"s_lshl_b32 s58, s45, 12\ns_add_u32 s58, s58, {WS_QG}")
    e("s_waitcnt vmcnt(7)")
    e(qload); g.issue("qg")
    e("s_cmp_lg_u32 s3, 7\ns_cbranch_scc1 L_nohg")
    hload = "\n".join(f"buffer_load_dwordx2 v[{16+2*k}:{17+2*k}], v30, s[36:39], s59 offen offset:{32*k} sc1" for k in range(7))
    e(f"""
    v_lshrrev_b32 v18, 2, v17
    v_mul_u32_u24 v18, 1792, v18
    v_add_u32 v18, v18, v16
    v_lshlrev_b32 v30, 3, v18
    s_lshl_b32 s59, s56, 3
    s_add_u32 s59, s59, {WS_HG}
    v_mul_u32_u24 v31, 0x40000, v16
    v_lshl_add_u32 v31, v17, 6, v31
    """)
    e(hload)
    for k in range(7): g.issue(f"hg{k}", "w7")
    e("L_nohg:")
    def vload(k):
        e(f"s_add_u32 s50, s48, {k*65536}")
        e(f"buffer_load_dwordx4 v[{VB+4*k}:{VB+4*k+3}], v6, s[8:11], s50 offen {NT}")
        g.issue(f"V{k}")
    for k in range(4): vload(k)
    g.wait("qg")
    g.check([207], qload, 18)
    g.stamp(6)
    for k in range(4, 8): vload(k)
    e("s_cmp_lg_u32 s3, 7\ns_cbranch_scc1 L_now2")
    g.wait("hg6", "w7")
    g.check([17+2*k for k in range(7)], hload, 32)
    for k in range(7):
        e(f"v_and_b32 v{AB+4*k+2}, v13, v{16+2*k}\nv_and_b32 v{AB+4*k+3}, v14, v{16+2*k}")
    for k in range(7):
        c1 = "0" if k == 0 else f"v[{ACC1}:{ACC1+3}]"; c2 = "0" if k == 0 else f"v[{ACC2}:{ACC2+3}]"
        e(f"v_mfma_f32_16x16x32_bf16 v[{ACC1}:{ACC1+3}], v[{AB+4*k+2}:{AB+4*k+5}], v[{KF+4*k}:{KF+4*k+3}], {c1}")
        e(f"v_mfma_f32_16x16x32_bf16 v[{ACC2}:{ACC2+3}], v[{AB+4*k}:{AB+4*k+3}], v[{KF+4*k}:{KF+4*k+3}], {c2}")
    e(f"""
    s_lshr_b32 s50, s2, 2
    s_lshl_b32 s50, s50, 12
    s_lshl_b32 s51, s57, 10
    s_add_u32 s50, s50, s51
    s_add_u32 s50, s50, {WS_O2G}
    """)
    for k in range(8): e(f"v_mov_b32 v{33+2*k}, s46")
    for k in range(8): e(f"v_mov_b32 v{32+2*k}, v{ACC1+k}")
    for k in range(4):
        e(f"buffer_store_dwordx4 v[{32+4*k}:{35+4*k}], v31, s[36:39], s50 offen offset:{16*k} sc1")
        g.issue(f"o2pub{k}", "w7")
    e("L_now2:")
    e("s_barrier")
    e("ds_write_b16 v202, v206")
    e("s_waitcnt lgkmcnt(0)\ns_barrier")
    g.stamp(7)
    if stop <= 2:
        e("s_waitcnt vmcnt(0)\ns_branch L_fin")
    for m in range(4): e(f"ds_read_b128 v[{32+4*m}:{35+4*m}], v12 offset:{64*m}")
    def krd(t):
        for m in range(4):
            r = KF + 16*(t & 1) + 4*m
            e(f"ds_read_b128 v[{r}:{r+3}], v{8+m} offset:{4096*t}")
    def kmm(t):
        for m in range(4):
            r = KF + 16*(t & 1) + 4*m; d = S0 + 4*t
            c = "0" if m == 0 else f"v[{d}:{d+3}]"
            e(f"v_mfma_f32_16x16x32_bf16 v[{d}:{d+3}], v[{r}:{r+3}], v[{32+4*m}:{35+4*m}], {c}")
    krd(0); krd(1)
    e("s_waitcnt lgkmcnt(4)"); kmm(0); krd(2)
    e("s_waitcnt lgkmcnt(4)"); kmm(1); krd(3)
    e("s_waitcnt lgkmcnt(4)"); kmm(2)
    e("s_waitcnt lgkmcnt(0)"); kmm(3)
    e("s_mov_b32 s51, 0x3db504f3")
    for k in range(16): g.rne(S0+k, S0+k)
    for k in range(16): e(f"v_mul_f32 v{S0+k}, s51, v{S0+k}")
    for k in range(16): g.rne(S0+k, S0+k)
    e(f"v_max3_f32 v16, v{S0}, v{S0+1}, v{S0+2}")
    for k in range(3, 15, 2): e(f"v_max3_f32 v16, v16, v{S0+k}, v{S0+k+1}")
    e(f"v_max_f32 v16, v16, v{S0+15}")
    g.xrow("v_max_f32", 16, 18)
    e(f"s_mov_b32 s51, {LOG2E:#x}\nv_mul_f32 v18, 0xbfb8aa3b, v16")
    for k in range(16): e(f"v_fma_f32 v{S0+k}, v{S0+k}, s51, v18")
    for k in range(16): e(f"v_exp_f32 v{S0+k}, v{S0+k}")
    e(f"v_add_f32 v17, v{S0}, v{S0+1}")
    e(f"v_add_f32 v19, v{S0+2}, v{S0+3}")
    for k in range(4, 16, 2): e(f"v_add_f32 v17, v17, v{S0+k}\nv_add_f32 v19, v19, v{S0+k+1}")
    e("v_add_f32 v17, v17, v19")
    g.xrow("v_add_f32", 17, 18)
    e("""
    s_mov_b64 exec, 0x1111
    ds_write_b64 v242, v[16:17]
    s_mov_b64 exec, -1
    s_waitcnt lgkmcnt(0)
    s_barrier
    """)
    g.stamp(8)
    for k in range(4): e(f"ds_read_b128 v[{32+4*k}:{35+4*k}], v243 offset:{16*k}")
    e("s_waitcnt lgkmcnt(0)")
    e("v_max3_f32 v18, v32, v34, v36\nv_max3_f32 v18, v18, v38, v40\nv_max3_f32 v18, v18, v42, v44\nv_max_f32 v18, v18, v46")
    e(f"v_sub_f32 v19, v16, v18\nv_mul_f32 v19, s51, v19\nv_exp_f32 v19, v19")
    e("s_cmp_lg_u32 s3, 2\ns_cbranch_scc1 L_nomlp")
    for k in range(8): e(f"v_sub_f32 v{32+2*k}, v{32+2*k}, v18")
    for k in range(8): e(f"v_mul_f32 v{32+2*k}, s51, v{32+2*k}")
    for k in range(8): e(f"v_exp_f32 v{32+2*k}, v{32+2*k}")
    e("v_mul_f32 v22, v32, v33")
    for k in range(1, 8): e(f"v_fmac_f32 v22, v{32+2*k}, v{33+2*k}")
    e(f"""
    v_mov_b32 v20, v18
    v_mov_b32 v21, s46
    v_mov_b32 v23, s46
    v_lshlrev_b32 v24, 2, v1
    s_lshl_b32 s50, s45, 3
    s_add_u32 s50, s50, s44
    s_lshl_b32 s50, s50, 6
    s_add_u32 s50, s50, {WS_MLG}
    s_mov_b64 exec, 0x1111
    buffer_store_dwordx4 v[20:23], v24, s[36:39], s50 offen sc1
    s_mov_b64 exec, -1
    """)
    g.issue("mlpub", "w2")
    e("L_nomlp:")
    for k in range(16): e(f"v_mul_f32 v{S0+k}, v{S0+k}, v19")
    for k in range(16): e(f"v_cvt_pk_bf16_f32 v{S0+k}, v{S0+k}, v{S0+k}")
    for k in range(16): e(f"v_and_b32 v{AB+4*k+2}, v13, v{S0+k}\nv_and_b32 v{AB+4*k+3}, v14, v{S0+k}")
    g.stamp(9)
    e(f"""
    s_lshl_b32 s52, s45, 9
    s_lshr_b32 s53, s3, 1
    s_lshl_b32 s53, s53, 4
    s_add_u32 s52, s52, s53
    s_add_u32 s52, s52, {WS_MLG}
    s_and_b32 s53, s45, 7
    s_lshl_b32 s53, s53, 19
    s_lshl_b32 s54, s44, 14
    s_add_u32 s53, s53, s54
    s_lshl_b32 s54, s3, 7
    s_add_u32 s53, s53, s54
    """)
    mlload = "buffer_load_dwordx4 v[28:31], v254, s[36:39], s52 offen sc1"
    def woload(k):
        off = (k >> 1)*131072 + (k & 1)*8192
        e(f"s_add_u32 m0, s49, {k*1024}")
        e(f"s_add_u32 s50, s53, {off}")
        e(f"buffer_load_dwordx4 v{246+(k&1)}, s[16:19], s50 offen {NTO} lds")
        g.issue(f"wo{k}")
    items = [lambda k=k: vload(k) for k in range(8, 16)]
    def mlg():
        e(mlload); g.issue("mlg")
    for k in range(16):
        g.wait(f"V{k}")
        if k < 8: items[k]()
        elif k == 8:
            mlg(); woload(0)
        else: woload(k-8)
        c1 = "0" if k == 0 else f"v[{ACC1}:{ACC1+3}]"; c2 = "0" if k == 0 else f"v[{ACC2}:{ACC2+3}]"
        b = f"v[{VB+4*k}:{VB+4*k+3}]"
        e(f"v_mfma_f32_16x16x32_bf16 v[{ACC1}:{ACC1+3}], v[{AB+4*k+2}:{AB+4*k+5}], {b}, {c1}")
        e(f"v_mfma_f32_16x16x32_bf16 v[{ACC2}:{ACC2+3}], v[{AB+4*k}:{AB+4*k+3}], {b}, {c2}")
        if k == 14:
            e("s_cmp_lg_u32 s3, 0\ns_cbranch_scc1 L_noo2g")
            e(f"""
            v_lshrrev_b32 v18, 2, v1
            v_and_b32 v19, 3, v1
            v_lshlrev_b32 v18, 12, v18
            v_lshl_add_u32 v15, v19, 4, v18
            v_lshlrev_b32 v19, 2, v19
            s_lshr_b32 s54, s2, 6
            s_and_b32 s55, s2, 63
            s_lshl_b32 s56, s54, 10
            s_lshl_b32 s57, s55, 4
            s_add_u32 s56, s56, s57
            s_lshl_b32 s54, s54, 18
            s_lshl_b32 s55, s55, 6
            s_add_u32 s54, s54, s55
            s_add_u32 s55, s54, {WS_O2G}
            buffer_load_dword v7, v19, s[40:43], s56 offen
            """)
            g.issue("xf", "w0")
            o2load = ""
            for u in range(4):
                o2load += f"s_add_u32 s50, s55, {u*65536}\nbuffer_load_dwordx4 v[{32+4*u}:{35+4*u}], v15, s[36:39], s50 offen sc1\n"
                g.issue(f"o2g{u}", "w0")
            e(o2load)
            e("L_noo2g:")
    g.stamp(10)
    e(f"ds_write_b128 v244, v[{ACC1}:{ACC1+3}]\nds_write_b128 v244, v[{ACC2}:{ACC2+3}] offset:1312")
    e("s_waitcnt lgkmcnt(0)\ns_barrier")
    for u in range(8): e(f"ds_read_b32 v{64+u}, v245 offset:{2624*u}")
    e(f"""
    s_lshl_b32 s50, s45, 3
    s_add_u32 s50, s50, s44
    s_lshl_b32 s57, s50, 12
    s_add_u32 s50, s57, {WS_OG}
    s_lshl_b32 s51, s45, 15
    s_lshl_b32 s58, s44, 9
    s_add_u32 s51, s51, s58
    s_lshl_b32 s58, s3, 6
    s_add_u32 s51, s51, s58
    s_add_u32 s58, s51, {WS_OG}
    s_waitcnt lgkmcnt(0)
    v_add_f32 v64, v64, v65
    v_add_f32 v66, v66, v67
    v_add_f32 v68, v68, v69
    v_add_f32 v70, v70, v71
    v_add_f32 v64, v64, v66
    v_add_f32 v68, v68, v70
    v_add_f32 v208, v64, v68
    buffer_store_dwordx2 v[208:209], v252, s[36:39], s50 offen sc1
    """)
    g.issue("opub")
    oload = "buffer_load_dwordx2 v[206:207], v253, s[36:39], s58 offen sc1"
    e(oload); g.issue("og")
    g.stamp(11)
    g.wait("mlg")
    g.check([29, 31], mlload, 18)
    e("v_mov_b32 v18, v28")
    g.dpp("v_max_f32", 18, "quad_perm:[1,0,3,2]")
    g.dpp("v_max_f32", 18, "quad_perm:[2,3,0,1]")
    g.dpp("v_max_f32", 18, "row_half_mirror")
    e(f"s_mov_b32 s51, {LOG2E:#x}\nv_sub_f32 v18, v28, v18\nv_mul_f32 v18, s51, v18\nv_exp_f32 v18, v18\nv_mul_f32 v19, v18, v30")
    g.dpp("v_add_f32", 19, "quad_perm:[1,0,3,2]")
    g.dpp("v_add_f32", 19, "quad_perm:[2,3,0,1]")
    g.dpp("v_add_f32", 19, "row_half_mirror")
    e("v_rcp_f32 v19, v19\nv_mul_f32 v205, v18, v19")
    g.wait("wo7")
    for T in range(4):
        for m in range(2):
            r = KF + 8*T + 4*m
            e(f"ds_read_b64_tr_b16 v[{r}:{r+1}], v{248+T} offset:{4096*m}")
            e(f"ds_read_b64_tr_b16 v[{r+2}:{r+3}], v{248+T} offset:{4096*m+512}")
    e("s_cmp_lg_u32 s3, 0\ns_cbranch_scc1 L_nog")
    g.wait("o2g3", "w0")
    g.check([33+2*k for k in range(8)], o2load, 18)
    def red4(base, d0, d1):
        e(f"v_add_f32 v{d0}, v{base}, v{base+4}\nv_add_f32 v{d1}, v{base+2}, v{base+6}")
        e(f"v_add_f32 v18, v{base+8}, v{base+12}\nv_add_f32 v19, v{base+10}, v{base+14}")
        e(f"v_add_f32 v{d0}, v{d0}, v18\nv_add_f32 v{d1}, v{d1}, v19")
        for r in (4, 8):
            g.dpp("v_add_f32", d0, f"row_ror:{r}"); g.dpp("v_add_f32", d1, f"row_ror:{r}")
        for sw in ("v_permlane16_swap_b32", "v_permlane32_swap_b32"):
            e(f"v_mov_b32 v18, v{d0}\nv_mov_b32 v19, v{d1}\ns_nop 0\n{sw} v{d0}, v18\n{sw} v{d1}, v19")
            e(f"v_add_f32 v{d0}, v{d0}, v18\nv_add_f32 v{d1}, v{d1}, v19")
    red4(32, 20, 21)
    g.rne(20, 20); g.rne(21, 21)
    g.silu(22, 20, 18); g.silu(23, 21, 19)
    e("L_nog:")
    g.wait("og")
    g.check([207], oload, 18)
    g.stamp(12)
    e("v_mul_f32 v18, v206, v205")
    g.dpp("v_add_f32", 18, "quad_perm:[1,0,3,2]")
    g.dpp("v_add_f32", 18, "quad_perm:[2,3,0,1]")
    g.dpp("v_add_f32", 18, "row_half_mirror")
    e(f"""
    v_cvt_pk_bf16_f32 v18, v18, v18
    s_mov_b32 exec_lo, 0x01010101
    s_mov_b32 exec_hi, 0x01010101
    ds_write_b16 v203, v18
    s_mov_b64 exec, -1
    s_waitcnt lgkmcnt(0)
    s_barrier
    ds_read_b128 v[64:67], v204
    ds_read_b128 v[68:71], v204 offset:64
    s_lshr_b32 s50, s45, 3
    s_lshl_b32 s50, s50, 6
    s_and_b32 s51, s45, 7
    s_lshl_b32 s51, s51, 3
    s_add_u32 s50, s50, s51
    s_add_u32 s50, s50, s44
    s_lshl_b32 s50, s50, 12
    s_add_u32 s50, s50, {WS_SG}
    v_lshrrev_b32 v16, 4, v1
    v_cmp_eq_u32 s[56:57], 1, v16
    v_cmp_le_u32 s[58:59], 2, v16
    v_cmp_eq_u32 vcc, 3, v16
    s_waitcnt lgkmcnt(0)
    """)
    for m in range(2):
        for T in range(4):
            r = KF + 8*T + 4*m; d = 72 + 4*T
            c = "0" if m == 0 else f"v[{d}:{d+3}]"
            e(f"v_mfma_f32_16x16x32_bf16 v[{d}:{d+3}], v[{64+4*m}:{67+4*m}], v[{r}:{r+3}], {c}")
    e("""
    v_cndmask_b32 v72, v72, v76, s[56:57]
    v_cndmask_b32 v80, v80, v84, vcc
    v_cndmask_b32 v208, v72, v80, s[58:59]
    """)
    e("buffer_store_dwordx2 v[208:209], v252, s[36:39], s50 offen sc1")
    g.issue("spub")
    g.stamp(13)
    e("s_cmp_lg_u32 s3, 0\ns_cbranch_scc1 L_fin")
    sload = ""
    e(f"s_add_u32 s55, s54, {WS_SG}")
    for u in range(4):
        sload += f"s_add_u32 s50, s55, {u*65536}\nbuffer_load_dwordx4 v[{64+4*u}:{67+4*u}], v15, s[36:39], s50 offen sc1\n"
    e(sload)
    e("v_lshlrev_b32 v24, 16, v7\nv_and_b32 v25, 0xffff0000, v7\nv_and_b32 v26, 3, v1\nv_lshlrev_b32 v26, 2, v26")
    e("s_lshr_b32 s56, s2, 6\ns_lshl_b32 s56, s56, 10\ns_and_b32 s57, s2, 63\ns_lshl_b32 s57, s57, 4\ns_add_u32 s56, s56, s57")
    e("s_waitcnt vmcnt(0)")
    g.check([65+2*k for k in range(8)], sload, 28)
    g.stamp(14)
    red4(64, 20, 21)
    g.rne(20, 20); g.rne(21, 21)
    e("v_mul_f32 v20, v20, v22\nv_mul_f32 v21, v21, v23")
    g.rne(20, 20); g.rne(21, 21)
    e("v_add_f32 v20, v24, v20\nv_add_f32 v21, v25, v21\nv_cvt_pk_bf16_f32 v20, v20, v21")
    e("""
    s_mov_b64 exec, 0xf
    buffer_store_dword v20, v26, s[32:35], s56 offen
    s_cmp_lg_u32 s2, 0
    s_cbranch_scc1 L_fin0
    s_add_u32 s50, s100, 1
    v_mov_b32 v20, s50
    v_mov_b32 v21, 0
    s_mov_b64 exec, 1
    buffer_store_dword v20, v21, s[36:39], 0 offen sc1
    """)
    e("L_fin0:\ns_mov_b64 exec, -1")
    e("L_fin:")
    if o.get("prof"):
        g.stamp(15)
        e("s_waitcnt lgkmcnt(0)")
        e("v_mov_b32 v16, 0")
        for k in range(32): e(f"v_writelane_b32 v16, s{60+k}, {k}")
        e(f"""
        s_lshl_b32 s50, s2, 3
        s_add_u32 s50, s50, s3
        s_lshl_b32 s50, s50, 7
        s_add_u32 s50, s50, {WS_PROF}
        v_lshlrev_b32 v17, 2, v1
        s_mov_b32 exec_hi, 0
        buffer_store_dword v16, v17, s[36:39], s50 offen
        s_mov_b64 exec, -1
        """)
    e("L_end:")
    e("s_endpgm")
    return g

def build(o, path):
    g = gen(o)
    lines, nn = fix(g.l)
    L = NAME + "_kernel"
    txt = open("cdna_kernels/" + NAME + ".s.ref").read().split("; Override launch")[0]
    txt += "; @launch grid=(256,1,1) block=(512,1,1) lds=163840\n"
    txt += '.amdgcn_target "amdgcn-amd-amdhsa--gfx950"\n.text\n' + kernel_begin(L) + "\n".join(lines) + "\n"
    txt += '.section .rodata,"a"\n.p2align 6\n' + kernel_desc(L, vgpr=256, sgpr=102)
    open(path, "w").write(txt)
    return len(lines), nn
if __name__ == "__main__":
    print(build(dict(prof=True), "k_prof.s"))
    print(build(dict(), "k.s"))
```

```python
import re
TRANS = ("v_exp_", "v_log_", "v_rcp_", "v_rsq_", "v_sqrt_", "v_sin_", "v_cos_")
def regs_of(tok):
    tok = tok.strip()
    m = re.fullmatch(r"([vs])\[(\d+):(\d+)\]", tok)
    if m: return {(m.group(1), i) for i in range(int(m.group(2)), int(m.group(3))+1)}
    m = re.fullmatch(r"([vs])(\d+)", tok)
    if m: return {(m.group(1), int(m.group(2)))}
    if tok == "vcc": return {("s", "vcc")}
    if tok in ("vcc_lo", "vcc_hi"): return {("s", "vcc")}
    if tok == "exec": return {("s", "exec")}
    if tok == "m0": return {("s", "m0")}
    return set()
class I:
    def __init__(self, text):
        self.text = text
        t = text.split(";")[0].strip()
        self.label = None
        self.op = None
        if t.endswith(":"):
            self.label = t[:-1]; return
        if not t or t.startswith("."):
            return
        p = t.split(None, 1)
        self.op = p[0]
        rest = p[1] if len(p) > 1 else ""
        ops = []; cur = ""; depth = 0
        for ch in rest:
            if ch == "[": depth += 1
            if ch == "]": depth -= 1
            if ch == "," and depth == 0: ops.append(cur.strip()); cur = ""
            else: cur += ch
        if cur.strip(): ops.append(cur.strip())
        self.mods = ""
        if ops:
            lp = ops[-1].split(None, 1)
            if len(lp) > 1 and not ops[-1].startswith("hwreg"):
                ops[-1] = lp[0]; self.mods = lp[1]
        self.ops = ops
        op = self.op
        self.is_mfma = op.startswith("v_mfma")
        self.is_valu = op.startswith("v_") and not self.is_mfma
        self.is_trans = op.startswith(TRANS)
        self.is_dpp = self.is_valu and ("_dpp" in op or "row_" in self.mods or "quad_perm" in self.mods)
        self.is_perm = op.startswith("v_permlane")
        self.is_rl = op.startswith("v_readfirstlane") or op.startswith("v_readlane")
        self.is_vmem = op.startswith("buffer_") or op.startswith("global_")
        self.is_ds = op.startswith("ds_")
        self.is_salu = op.startswith("s_")
        self.wr = set(); self.rd = set()
        R = [regs_of(o) for o in ops]
        if self.is_mfma:
            self.D = R[0]; self.A = R[1]; self.B = R[2]; self.C = R[3]
            self.wr = set(self.D); self.rd = self.A | self.B | self.C
        elif self.is_valu:
            if self.is_perm and "swap" in op:
                self.wr = R[0] | R[1]; self.rd = R[0] | R[1]
            elif op.startswith("v_cmp"):
                self.wr = R[0]; self.rd = set().union(*R[1:])
            elif op.startswith(("v_add_co", "v_sub_co", "v_addc_co", "v_subb_co")):
                self.wr = R[0] | R[1]; self.rd = set().union(*R[2:])
            else:
                self.wr = R[0]; self.rd = set().union(*R[1:]) if len(R) > 1 else set()
                if op.startswith(("v_fmac", "v_mac", "v_pk_fmac", "v_dot2c")) or self.is_dpp or "d16" in op:
                    self.rd |= R[0]
        elif self.is_vmem:
            lds = " lds" in (" " + self.mods)
            if "load" in op and not lds:
                self.wr = R[0]; self.rd = set().union(*R[1:])
            else:
                self.rd = set().union(*R)
            self.lds = lds
            self.store = "store" in op
            self.wide = op.endswith(("x3", "x4"))
        elif self.is_ds:
            if op.startswith("ds_read"):
                self.wr = R[0]; self.rd = set().union(*R[1:])
            else:
                self.rd = set().union(*R)
        elif self.is_salu:
            if op.startswith(("s_cmp", "s_cbranch", "s_branch", "s_waitcnt", "s_nop", "s_barrier", "s_endpgm", "s_sleep", "s_setprio", "s_bitcmp")):
                self.rd = set().union(*R) if R else set()
            else:
                self.wr = R[0] if R else set(); self.rd = set().union(*R[1:]) if len(R) > 1 else set()
                if "saveexec" in op: self.wr = self.wr | {("s", "exec")}
    def states(self):
        if self.op == "s_nop": return int(self.ops[0], 0) + 1
        return 1 if self.op else 0
def vg(s): return {r for r in s if r[0] == "v"}
def sg(s): return {r for r in s if r[0] == "s"}
def need(p, c):
    n = 0
    if p.is_valu:
        pv = vg(p.wr); ps = sg(p.wr)
        if c.is_mfma and pv & c.rd: n = max(n, 2)
        if c.is_valu and c.is_dpp and pv & c.rd: n = max(n, 2)
        if c.is_valu and c.is_perm and pv & c.rd: n = max(n, 2)
        if c.is_valu and c.is_rl and pv & c.rd: n = max(n, 1)
        if p.is_trans and c.is_valu and pv & c.rd: n = max(n, 1)
        if p.is_trans and (c.is_vmem or c.is_ds) and pv & c.rd: n = max(n, 1)
        if ps and c.is_valu and ps & c.rd: n = max(n, 2)
        if ps and c.is_valu and c.op.startswith("v_cndmask") and ("s", "vcc") in ps and len(c.ops) == 3: n = max(n, 2)
        if ps and c.is_vmem and ps & c.rd: n = max(n, 5)
        if ("s", "exec") in ps: n = max(n, 5)
    if p.is_mfma:
        if c.is_mfma:
            if p.D & (c.A | c.B): n = max(n, 8)
            if p.D & c.C and p.D != c.C: n = max(n, 6)
            if p.D & c.D and p.D != c.C and p.D != c.D: n = max(n, 6)
        elif c.is_valu:
            if p.D & (c.rd | c.wr): n = max(n, 8)
            if p.C & c.wr: n = max(n, 3)
        elif c.is_vmem or c.is_ds:
            if p.D & (c.rd | c.wr): n = max(n, 8)
    if p.is_salu and ("s", "m0") in p.wr and c.is_vmem and getattr(c, "lds", False): n = max(n, 1)
    if p.is_vmem and p.store and p.wide:
        data = regs_of(p.ops[0])
        if c.is_valu and vg(c.wr) & data: n = max(n, 2)
        elif vg(c.wr) & data and not c.is_salu: n = max(n, 1)
    return n
W = 10
def fix(lines):
    ins = [I(l) for l in lines]
    out = []
    pend = {}
    hist = []
    nins = 0
    seen_labels = set()
    for it in ins:
        if it.label is not None:
            seen_labels.add(it.label)
            for st in pend.pop(it.label, []):
                for (p, age) in st:
                    found = False
                    for h in hist:
                        if h[0] is p:
                            h[1] = min(h[1], age); found = True
                    if not found: hist.append([p, age])
            out.append(it.text); continue
        if it.op is None:
            out.append(it.text); continue
        req = 0
        for (p, age) in hist:
            k = need(p, it)
            if k > age: req = max(req, k - age)
        if req > 0:
            out.append(f"    s_nop {req-1}"); nins += 1
            for h in hist: h[1] += req
        out.append(it.text)
        s = it.states()
        for h in hist: h[1] += s
        hist = [h for h in hist if h[1] < W]
        hist.append([it, 0])
        if it.op.startswith(("s_cbranch", "s_branch")):
            tgt = it.ops[0]
            if tgt in seen_labels:
                pass
            else:
                pend.setdefault(tgt, []).append([(h[0], h[1]) for h in hist])
            if it.op == "s_branch": hist = []
        if it.op == "s_endpgm": hist = []
    return out, nins
```

```python
import sys
from gen import build
V = {
 "a": dict(),
 "b": dict(ntw=""),
 "c": dict(ntw="", nto="nt"),
}
for n in sys.argv[1:]:
    build(dict(prof=True, **V[n]), f"k_prof_{n}.s")
    build(dict(**V[n]), f"k_{n}.s")
```
